```python
import torch

def _softmax(x, axis=-1):
    return torch.softmax(x, dim=axis)
def _gelu(x):
    return torch.nn.functional.gelu(x, approximate="tanh")
def _silu(x):
    return torch.nn.functional.silu(x)
def _sigmoid(x):
    return torch.sigmoid(x)
def _layernorm(x, axis=-1, eps=1e-5):
    m = x.mean(dim=axis, keepdim=True)
    v = x.var(dim=axis, keepdim=True, unbiased=False)
    return (x - m) / torch.sqrt(v + eps)
def _scatter_add(tgt, idx, src, axis=0):
    return tgt.clone().index_add_(axis, idx, src)
def _segment_sum(src, seg, n):
    out = torch.zeros((n,) + src.shape[1:], dtype=src.dtype)
    return out.index_add_(0, seg, src)
def _pad(x, pw):
    flat = tuple(v for pair in reversed(pw) for v in pair)
    return torch.nn.functional.pad(x, flat)

kernel_name = 'recurrent_scan__gqa_block_cached__mixer_channel_mlp__decode'

def setup_inputs():

    _w = (lambda a: (lambda t: t.to(torch.bfloat16) if t.is_floating_point() else t)(torch.as_tensor(a)))
    def _A_setup():
        B, Sq, D = 2, 1, 1024
        Hq, Hkv, Sk, Dh = 32, 4, 16384, 128
        assert Hq % Hkv == 0, (Hq, Hkv)
        return {
            "x": _w((lambda *s: torch.randn(*s, dtype=torch.bfloat16) * 0.1)(B, Sq, D)),
            "k_cache": _w((lambda *s: torch.randn(*s, dtype=torch.bfloat16) * 0.8)(B, Hkv, Sk, Dh)),
            "v_cache": _w((lambda *s: torch.randn(*s, dtype=torch.bfloat16) * 3.2)(B, Hkv, Sk, Dh)),
            "wq": _w((lambda *s: torch.randn(*s, dtype=torch.bfloat16) * 0.8)(D, Hq * Dh) * (D ** -0.5)),
            "wo": _w((lambda *s: torch.randn(*s, dtype=torch.bfloat16) * 3.2)(Hq * Dh, D) * ((Hq * Dh) ** -0.5)),
        }
    _A_in = _A_setup()

    def _B_setup():
        B, S, D, F = 2, 1, 1024, 3584
        return {
            "x": _w((lambda *s: torch.randn(*s, dtype=torch.bfloat16) * 0.1)(B, S, D)),
            "w1": _w((lambda *s: torch.randn(*s, dtype=torch.bfloat16) * 3.2)(D, F) * (D ** -0.5)),
            "b1": _w((lambda *s: torch.randn(*s, dtype=torch.bfloat16) * 3.2)(F)),
            "w2": _w((lambda *s: torch.randn(*s, dtype=torch.bfloat16) * 3.2)(F, D) * (F ** -0.5)),
            "b2": _w((lambda *s: torch.randn(*s, dtype=torch.bfloat16) * 3.2)(D)),
        }
    _B_in = _B_setup()

    return {
        "A_x": _A_in["x"],
        "A_k_cache": _A_in["k_cache"],
        "A_v_cache": _A_in["v_cache"],
        "A_wq": _A_in["wq"],
        "A_wo": _A_in["wo"],
        "B_x": _B_in["x"],
        "B_w1": _B_in["w1"],
        "B_b1": _B_in["b1"],
        "B_w2": _B_in["w2"],
        "B_b2": _B_in["b2"],
    }

def reference(A_x, A_k_cache, A_v_cache, A_wq, A_wo, B_x, B_w1, B_b1, B_w2, B_b2):
    def _A_ref(x, k_cache, v_cache, wq, wo):
        B, Sq, D = x.shape
        Hq, Dh = 32, 128
        Hkv = k_cache.shape[1]
        rep = Hq // Hkv
        q = (lambda x, *d: x.permute(*d))((x @ wq).reshape(B, Sq, Hq, Dh), 0, 2, 1, 3)
        k = (lambda x, n, axis: torch.repeat_interleave(x, n, dim=axis))(k_cache, rep, axis=1)
        v = (lambda x, n, axis: torch.repeat_interleave(x, n, dim=axis))(v_cache, rep, axis=1)
        scores = torch.einsum("bhqd,bhkd->bhqk", q, k) * (Dh ** -0.5)
        p = _softmax(scores, axis=-1)
        o = torch.einsum("bhqk,bhkd->bhqd", p, v)
        return (lambda x, *d: x.permute(*d))(o, 0, 2, 1, 3).reshape(B, Sq, Hq * Dh) @ wo

    def _B_ref(x, w1, b1, w2, b2):
        y = _layernorm(x, axis=-1)
        h = _gelu(torch.einsum("bsd,df->bsf", y, w1) + b1)
        return torch.einsum("bsf,fd->bsd", h, w2) + b2

    x = A_x
    xn = _layernorm(x, axis=-1)
    s = _A_ref(xn, A_k_cache, A_v_cache, A_wq, A_wo)
    g = _silu(_B_ref(xn, B_w1, B_b1, B_w2, B_b2))
    return x + s * g
```

```python
import re
TRANS = ("v_exp_f32","v_log_f32","v_rcp_f32","v_rsq_f32","v_sqrt_f32","v_sin_f32","v_cos_f32")
def regs(tok):
    tok = tok.strip()
    tok = tok.lstrip("-").replace("abs(", "").replace("|", "").rstrip(")")
    m = re.fullmatch(r"([vsa])(\d+)", tok)
    if m: return {(m.group(1), int(m.group(2)))}
    m = re.fullmatch(r"([vsa])\[(\d+):(\d+)\]", tok)
    if m: return {(m.group(1), i) for i in range(int(m.group(2)), int(m.group(3)) + 1)}
    if tok == "vcc": return {("s", 106), ("s", 107)}
    if tok == "exec": return {("s", 126), ("s", 127)}
    if tok == "m0": return {("s", 124)}
    return set()
class Ins:
    def __init__(self, text):
        self.text = text
        t = text.split(";")[0].strip()
        self.label = t.endswith(":")
        self.direc = t.startswith(".") or t == ""
        self.op = ""; self.dst = set(); self.src = set(); self.ops = []
        self.srcC = set(); self.srcAB = set(); self.data = set()
        if self.label or self.direc: return
        parts = t.split(None, 1)
        self.op = op = parts[0]
        rest = parts[1] if len(parts) > 1 else ""
        ops = []; cur = ""; depth = 0
        for ch in rest:
            if ch == "[": depth += 1
            if ch == "]": depth -= 1
            if ch == "," and depth == 0: ops.append(cur.strip()); cur = ""
            else: cur += ch
        if cur.strip(): ops.append(cur.strip())
        mods = ""
        if ops:
            sp = ops[-1].split(None, 1)
            ops[-1] = sp[0]; mods = sp[1] if len(sp) > 1 else ""
        self.ops = ops; self.mods = mods
        R = [regs(o) for o in ops]
        self.valu = op.startswith("v_") and not op.startswith("v_mfma")
        self.mfma = op.startswith("v_mfma")
        self.trans = any(op.startswith(x) for x in TRANS)
        self.dpp = "_dpp" in op or "row_" in mods or "quad_perm" in mods
        self.perml = op.startswith("v_permlane")
        self.rdlane = op.startswith("v_readfirstlane") or op.startswith("v_readlane")
        self.ds = op.startswith("ds_")
        self.vmem = op.startswith("buffer_") or op.startswith("global_")
        self.salu = op.startswith("s_")
        self.lds_dma = self.vmem and (" lds" in (" " + mods) or "_lds_" in op)
        self.dot = op.startswith("v_dot")
        U = lambda L: set().union(*L) if L else set()
        if self.mfma:
            self.dst = R[0]; self.srcAB = R[1] | R[2]; self.srcC = R[3]; self.src = self.srcAB | self.srcC
        elif self.valu:
            if self.perml: self.dst = R[0] | R[1]; self.src = R[0] | R[1]
            elif op.startswith("v_cmp"): self.dst = R[0]; self.src = U(R[1:])
            elif op.startswith(("v_add_co", "v_addc_co", "v_sub_co")): self.dst = R[0] | R[1]; self.src = U(R[2:])
            else:
                self.dst = R[0]; self.src = U(R[1:])
                if op.startswith(("v_fmac", "v_dot2c", "v_pk_fmac")) or self.dpp: self.src |= R[0]
                if op.startswith("v_cndmask") and len(ops) == 3: self.src |= regs("vcc")
        elif self.ds:
            if op.startswith(("ds_read", "ds_bpermute", "ds_permute", "ds_swizzle")) or "_rtn" in op: self.dst = R[0]; self.src = U(R[1:])
            else: self.src = U(R)
        elif self.vmem:
            if self.lds_dma: self.src = U(R) | regs("m0")
            elif "load" in op: self.dst = R[0]; self.src = U(R[1:])
            elif op.startswith("buffer_"):
                self.src = U(R); self.data = R[0]
                if "atomic" in op and "sc0" in mods: self.dst = R[0]
            else:
                if "atomic" in op and "sc0" in mods: self.dst = R[0]; self.src = U(R[1:]); self.data = R[2]
                else: self.src = U(R); self.data = R[1]
        elif self.salu:
            if op.startswith(("s_cmp", "s_cbranch", "s_branch", "s_waitcnt", "s_nop", "s_sleep", "s_barrier", "s_endpgm", "s_setprio", "s_setpc", "s_bitcmp")): self.src = U(R)
            else: self.dst = R[0]; self.src = U(R[1:])
            if "saveexec" in op: self.dst |= regs("exec")
        self.wide_store = self.vmem and ("store" in op) and ("x3" in op or "x4" in op)
    def states(self):
        if self.label or self.direc: return 0
        if self.op == "s_nop": return int(self.ops[0], 0) + 1
        return 1
def V(s): return {r for r in s if r[0] in "va"}
def S(s): return {r for r in s if r[0] == "s"}
def need(p, c):
    n = 0
    if p.valu:
        w = V(p.dst); ws = S(p.dst)
        if c.mfma and w & c.src: n = max(n, 2)
        if c.valu and c.dpp and w & V(c.src): n = max(n, 2)
        if c.valu and c.perml and w & c.src: n = max(n, 2)
        if c.valu and c.rdlane and w & V(c.src): n = max(n, 1)
        if p.trans and (c.valu or c.mfma) and not c.trans and w & c.src: n = max(n, 1)
        if p.trans and c.trans and w & c.src: n = max(n, 1)
        if p.dot and (c.valu or c.mfma or c.vmem or c.ds) and (w & (c.src | c.dst)):
            same_acc = c.dot and c.op == p.op and not (w & (regs(c.ops[1]) | regs(c.ops[2])))
            if not same_acc: n = max(n, 3)
        if ws:
            if c.vmem and ws & c.src: n = max(n, 5)
            if c.valu and ws & S(c.src): n = max(n, 4 if c.rdlane else 2)
            if c.salu and ws & c.src: n = max(n, 1)
    if p.mfma:
        d = p.dst
        if c.mfma:
            if d & c.srcAB: n = max(n, 8)
            if d & c.srcC and not (c.srcC == d): n = max(n, 6)
            if d & c.dst and not (c.srcC == d and c.dst == d): n = max(n, 8)
        elif (c.valu or c.ds or c.vmem) and d & (c.src | c.dst): n = max(n, 8)
        if c.valu and p.srcC & c.dst: n = max(n, 3)
    if p.wide_store and c.valu and p.data & c.dst: n = max(n, 2)
    if p.wide_store and (c.ds or c.vmem) and p.data & c.dst: n = max(n, 1)
    if p.salu and ("s", 124) in p.dst and c.lds_dma: n = max(n, 1)
    return n
class Asm:
    def __init__(self): self.L = []
    def __call__(self, text):
        for line in text.strip("\n").split("\n"):
            self.L.append(line.strip())
    def finish(self):
        out = []; hist = []
        nn = 0
        for t in self.L:
            c = Ins(t)
            if not (c.label or c.direc):
                dist = 0; req = 0
                for p in reversed(hist):
                    if dist >= 10: break
                    if not (p.label or p.direc):
                        r = need(p, c) - dist
                        req = max(req, r)
                    dist += p.states()
                if c.op.startswith(("s_branch", "s_cbranch", "s_call", "s_setpc", "s_swappc")):
                    dist = 0
                    for p in reversed(hist):
                        if dist >= 10: break
                        if not (p.label or p.direc):
                            worst = 8 if p.mfma else (5 if (p.valu and S(p.dst)) else (3 if p.dot else (2 if (p.valu or p.wide_store) else 0)))
                            req = max(req, worst - dist - 1)
                        dist += p.states()
                if req > 0:
                    nop = Ins(f"s_nop {req-1}"); out.append(nop); hist.append(nop); nn += 1
            out.append(c); hist.append(c)
        return "\n".join(("" if (i.label or i.direc or i.text.startswith(";")) else "    ") + i.text for i in out) + "\n"
```

```python
import sys, struct
from asmlib import Asm
KN = "recurrent_scan__gqa_block_cached__mixer_channel_mlp__decode_kernel"
def f2u(x): return struct.unpack("<I", struct.pack("<f", x))[0]
LOG2E = 1.4426950408889634
QP, HP, SP, MP, OP, STP, WS_SIZE = 0x0, 0x40000, 0x80000, 0xC0000, 0x100000, 0x200000, 0x208000
L_K = 0
L_XN = 131072; L_Y = L_XN + 4096; L_RED = L_Y + 4096; L_Q = L_RED + 8192; QS = 272
L_ST = L_Q + 8 * QS
L_SCR = L_ST + 512
L_CNT = L_SCR + 1024
LDS_SIZE = L_CNT + 64
C_RED0, C_RED1, F_XN, F_Y, F_CQ, F_CH, C_Q, C_VISS, C_ST, C_OA, C_OB, C_STPUB, C_OPUB = [4 * i for i in range(13)]
OS = 528
HEADER = open("recurrent_scan__gqa_block_cached__mixer_channel_mlp__decode.s.ref").read().split("; Override")[0]

def gen(diag=False, th_wo=8, th_w2=8, NST=12):
    a = Asm()
    uid = [0]
    def lab(p):
        uid[0] += 1; return f"L_{p}{uid[0]}"
    def stamp(i):
        if diag:
            a(f"s_memrealtime s[{64+2*i}:{65+2*i}]"); a("s_waitcnt lgkmcnt(0)")
    def srd(d, p, n):
        a(f"s_mov_b32 s{d}, s{p}\ns_and_b32 s{d+1}, s{p+1}, 0xffff\ns_mov_b32 s{d+2}, {n}\ns_mov_b32 s{d+3}, 0x20000")
    def spin_lds(off, n, sleep=1, vt="v5", base="v4"):
        l = lab("sp"); d = lab("sd")
        a("s_mov_b32 s63, 0")
        a(f"{l}:")
        a(f"ds_read_b32 {vt}, {base} offset:{off}")
        a("s_waitcnt lgkmcnt(0)")
        a(f"v_readfirstlane_b32 s62, {vt}")
        a(f"s_cmp_ge_u32 s62, {n}")
        a(f"s_cbranch_scc1 {d}")
        if sleep: a(f"s_sleep {sleep}")
        a("s_add_u32 s63, s63, 1")
        a("s_cmp_lt_u32 s63, 0x100000")
        a(f"s_cbranch_scc1 {l}")
        a(f"{d}:")
    def arrive(off, vt="v5"):
        a(f"v_mov_b32 {vt}, 1")
        a("s_mov_b64 exec, 1")
        a(f"ds_add_u32 v4, {vt} offset:{off}")
        a("s_mov_b64 exec, -1")
    def red32(v, op, t):
        for r in (8, 4, 2, 1):
            a(f"{op}_dpp {v}, {v}, {v} row_ror:{r} row_mask:0xf bank_mask:0xf")
        a(f"v_mov_b32 {t}, {v}")
        a(f"v_permlane16_swap_b32 {t}, {v}")
        a(f"{op} {v}, {v}, {t}")
    def call(name):
        a(f"s_call_b64 s[60:61], {name}")
    def bfr1(v, t):
        a(f"v_cvt_pk_bf16_f32 {t}, {v}, {v}")
        a(f"v_lshlrev_b32 {v}, 16, {t}")
    def bfr2(v0, v1, t):
        a(f"v_cvt_pk_bf16_f32 {t}, {v0}, {v1}")
        a(f"v_lshlrev_b32 {v0}, 16, {t}")
        a(f"v_and_b32 {v1}, s15, {t}")

    a(HEADER.rstrip("\n"))
    a(f"; @launch grid=(256,1,1) block=(1024,1,1) lds={LDS_SIZE}")
    a('.amdgcn_target "amdgcn-amd-amdhsa--gfx950"')
    a(f".text\n.globl {KN}\n.p2align 8\n.type {KN},@function\n{KN}:")
    if diag:
        a("s_memrealtime s[64:65]")
    a("s_load_dwordx16 s[16:31], s[0:1], 0")
    a("s_load_dwordx8 s[32:39], s[0:1], 64")
    a("s_load_dwordx2 s[40:41], s[0:1], 96")
    a("s_cmp_ge_u32 s2, 256")
    a("s_cbranch_scc1 L_end")
    a("v_lshrrev_b32 v2, 6, v0")
    a("v_and_b32 v1, 63, v0")
    a("v_readfirstlane_b32 s3, v2")
    a("v_bfe_u32 v2, v0, 4, 2")
    a("v_and_b32 v3, 15, v0")
    a(f"v_mov_b32 v4, {L_CNT}")
    a("s_and_b32 s4, s2, 7")
    a("s_lshr_b32 s5, s2, 3")
    a("s_mov_b32 s15, 0xffff0000")
    if diag:
        for i in range(1, NST): a(f"s_mov_b64 s[{64+2*i}:{65+2*i}], 0")
    a("s_cmp_ge_u32 s3, 8")
    a("s_cbranch_scc1 L_attn")

    a("s_and_b32 s6, s3, 3")
    a("s_lshr_b32 s7, s3, 2")
    a("s_lshl_b32 s8, s4, 7\ns_lshl_b32 s9, s6, 5\ns_add_u32 s8, s8, s9")
    a("s_cmp_eq_u32 s7, 0")
    a("s_movk_i32 s9, 7168\ns_cselect_b32 s9, 8192, s9")
    a("v_mul_lo_u32 v6, v2, s9")
    a("v_lshlrev_b32 v6, 3, v6")
    a("v_lshl_add_u32 v6, v3, 4, v6")
    a("s_mul_i32 s10, s8, s9\ns_lshl_b32 s11, s5, 8\ns_add_u32 s10, s10, s11")
    a("v_lshrrev_b32 v10, 5, v1\nv_lshlrev_b32 v10, 11, v10\nv_and_b32 v11, 31, v1\nv_lshl_add_u32 v10, v11, 4, v10")
    a("v_lshlrev_b32 v8, 4, v1")
    a("v_mov_b32 v12, -1\nv_mov_b32 v13, -1\nv_mov_b32 v14, -1\nv_mov_b32 v15, -1")
    a("s_waitcnt lgkmcnt(0)")
    a("s_cmp_eq_u32 s7, 0")
    a("s_cselect_b32 s44, s22, s28\ns_cselect_b32 s45, s23, s29")
    a("s_cselect_b32 s48, s24, s32\ns_cselect_b32 s49, s25, s33")
    a("s_mov_b32 s46, 0x700000\ns_cselect_b32 s46, 0x800000, s46\ns_mov_b32 s50, s46")
    a("s_and_b32 s45, s45, 0xffff\ns_and_b32 s49, s49, 0xffff\ns_mov_b32 s47, 0x20000\ns_mov_b32 s51, 0x20000")
    a("s_cmp_ge_u32 s5, 28\ns_cselect_b32 s11, s7, 0\ns_cmp_lg_u32 s11, 0\ns_cselect_b32 s46, 0, s46")
    srd(52, 40, WS_SIZE)
    srd(56, 16, 4096)
    a("s_cmp_lg_u32 s6, 0")
    a("s_cbranch_scc1 L_nox")
    for i in range(4):
        a(f"buffer_load_dwordx4 v[{40+4*i}:{43+4*i}], v10, s[56:59], 0 offen offset:{512*i}")
    a("L_nox:")
    for j in range(8):
        if j: a("s_add_u32 s10, s10, s9")
        a(f"buffer_load_dwordx4 v[{64+4*j}:{67+4*j}], v6, s[44:47], s10 offen nt")
    a("s_lshl_b32 s12, s4, 5\ns_add_u32 s12, s12, s5")
    a("s_lshl_b32 s13, s4, 2\ns_and_b32 s11, s5, 3\ns_add_u32 s13, s13, s11")
    a("s_lshr_b32 s14, s5, 2")
    a("s_cmp_eq_u32 s7, 0")
    a("s_cbranch_scc0 L_clr1")
    a(f"s_lshl_b32 s10, s12, 12\ns_lshl_b32 s11, s6, 10\ns_add_u32 s10, s10, s11\ns_add_u32 s10, s10, {OP}")
    a("buffer_store_dwordx4 v[12:15], v8, s[52:55], s10 offen sc1")
    a(f"s_lshl_b32 s42, s13, 3\ns_add_u32 s42, s42, s14\ns_lshl_b32 s42, s42, 10\ns_add_u32 s42, s42, {SP}")
    a(f"s_lshl_b32 s43, s2, 10\ns_add_u32 s43, s43, {QP}")
    a("s_cmp_eq_u32 s6, 1")
    a("s_cbranch_scc0 L_clr0b")
    a("buffer_store_dwordx4 v[12:15], v8, s[52:55], s42 offen sc1")
    a("L_clr0b:")
    a("s_cmp_eq_u32 s6, 0")
    a("s_cbranch_scc0 L_clrdone")
    a(f"s_lshl_b32 s10, s12, 7\ns_add_u32 s10, s10, {STP}")
    a("s_mov_b64 exec, 0xff")
    a("buffer_store_dwordx4 v[12:15], v8, s[52:55], s10 offen sc1")
    a("s_mov_b64 exec, 0xffff")
    a("v_mov_b32 v5, 0\nv_lshl_add_u32 v11, v1, 2, v4")
    a("ds_write_b32 v11, v5")
    a("s_mov_b64 exec, -1")
    a("s_waitcnt lgkmcnt(0)")
    a("s_branch L_clrdone")
    a("L_clr1:")
    a(f"s_lshl_b32 s42, s2, 10\ns_add_u32 s43, s42, {HP}\ns_add_u32 s42, s42, {MP}")
    a("s_cmp_eq_u32 s6, 0")
    a("s_cbranch_scc0 L_clrdone")
    a("buffer_store_dwordx4 v[12:15], v8, s[52:55], s42 offen sc1")
    a("L_clrdone:")
    a("s_barrier")
    stamp(1)
    a("v_and_b32 v11, 7, v3\nv_lshrrev_b32 v12, 1, v11\nv_and_b32 v11, 1, v11")
    a("v_cmp_eq_u32 vcc, 1, v11")
    a("v_mov_b32 v13, 0x0c0c0100\nv_mov_b32 v14, 0x01000c0c\nv_cndmask_b32 v13, v13, v14, vcc")
    a("v_mov_b32 v14, 0x0c0c0302\nv_mov_b32 v15, 0x03020c0c\nv_cndmask_b32 v14, v14, v15, vcc")
    a("v_mov_b32 v15, 0x0c0c0c0c")
    for i in range(4):
        a(f"v_cmp_eq_u32 vcc, {i}, v12")
        a(f"v_cndmask_b32 v{16+2*i}, v15, v13, vcc\nv_cndmask_b32 v{17+2*i}, v15, v14, vcc")
    a("v_lshrrev_b32 v11, 1, v2\nv_lshlrev_b32 v7, 9, v11\nv_lshl_add_u32 v7, v3, 5, v7\nv_and_b32 v11, 1, v2\nv_lshl_add_u32 v7, v11, 4, v7")
    a(f"s_lshl_b32 s10, s7, 12\ns_add_u32 s10, s10, {L_RED}\nv_add_u32 v9, s10, v8")
    a(f"s_lshl_b32 s10, s3, 10\ns_add_u32 s10, s10, {L_RED}\nv_add_u32 v8, s10, v8")
    a("s_lshl_b32 s10, s7, 2\nv_add_u32 v12, s10, v4")
    a(f"s_lshl_b32 s10, s3, 7\ns_add_u32 s10, s10, {L_SCR}")
    a("v_lshrrev_b32 v11, 5, v1\nv_lshlrev_b32 v13, 6, v11\nv_and_b32 v11, 7, v1\nv_lshl_add_u32 v13, v11, 3, v13\nv_and_b32 v11, 1, v2\nv_lshl_add_u32 v13, v11, 2, v13\nv_add_u32 v13, s10, v13")
    a("v_lshrrev_b32 v11, 3, v3\nv_lshlrev_b32 v14, 6, v11\nv_lshl_add_u32 v14, v2, 4, v14\nv_add_u32 v14, s10, v14")
    a("s_cmp_lg_u32 s6, 0")
    a("s_cbranch_scc1 L_lnwait")
    a("s_waitcnt vmcnt(8)")
    call("F_ln")
    a("s_cmp_eq_u32 s7, 0")
    a("s_cbranch_scc1 L_ln1")
    call("F_ln")
    a("L_ln1:")
    a(f"s_lshl_b32 s10, s7, 12\ns_add_u32 s10, s10, {L_XN}\nv_add_u32 v10, s10, v10")
    for i in range(4):
        a(f"ds_write_b128 v10, v[{40+4*i}:{43+4*i}] offset:{512*i}")
    a("s_waitcnt lgkmcnt(0)")
    a("v_mov_b32 v5, 1")
    a(f"ds_write_b32 v12, v5 offset:{F_XN}")
    a("L_lnwait:")
    spin_lds(F_XN, 1, sleep=1, base="v12")
    stamp(2)
    a(f"s_lshl_b32 s10, s7, 12\ns_lshl_b32 s11, s8, 1\ns_add_u32 s10, s10, s11\ns_add_u32 s10, s10, {L_XN}")
    a("v_lshrrev_b32 v11, 3, v3\nv_lshlrev_b32 v10, 11, v11\nv_lshl_add_u32 v10, v2, 4, v10\nv_add_u32 v10, s10, v10")
    a("ds_read_b128 v[24:27], v10")
    a("s_mov_b32 s10, s43")
    call("F_gemv")
    stamp(3)
    a("s_cmp_eq_u32 s11, 0")
    a("s_cbranch_scc1 L_cwait")
    a("s_waitcnt vmcnt(0)")
    a("s_lshl_b32 s10, s7, 7\nv_mov_b32 v10, s10\nv_mov_b32 v5, 1")
    a("s_mov_b64 exec, 1")
    a("global_atomic_add v10, v5, s[38:39] sc1")
    a("s_mov_b64 exec, -1")
    a("s_mov_b32 s63, 0")
    a("L_cpoll:")
    a("global_load_dword v5, v10, s[38:39] sc1")
    a("s_waitcnt vmcnt(0)")
    a("v_readfirstlane_b32 s62, v5")
    a("s_cmp_ge_u32 s62, 256")
    a("s_cbranch_scc1 L_cdone")
    a("s_sleep 4")
    a("s_add_u32 s63, s63, 1\ns_cmp_lt_u32 s63, 0x40000\ns_cbranch_scc1 L_cpoll")
    a("L_cdone:")
    a("v_mov_b32 v5, 1")
    a(f"ds_write_b32 v12, v5 offset:{F_CQ}")
    a("L_cwait:")
    spin_lds(F_CQ, 1, sleep=2, base="v12")
    stamp(4)
    a("s_cmp_eq_u32 s7, 0")
    a("s_cbranch_scc0 L_mlp")

    a("v_lshrrev_b32 v10, 5, v1\nv_lshlrev_b32 v10, 10, v10\nv_and_b32 v11, 31, v1\nv_lshl_add_u32 v10, v11, 4, v10")
    a("s_and_b32 s10, s4, 3\ns_lshl_b32 s10, s10, 16\ns_lshl_b32 s11, s6, 14\ns_add_u32 s10, s10, s11")
    a(f"s_lshr_b32 s11, s4, 2\ns_lshl_b32 s11, s11, 9\ns_add_u32 s10, s10, s11\ns_add_u32 s10, s10, {QP}")
    for k in range(8):
        if k and k % 2 == 0: a("s_add_u32 s10, s10, 4096")
        a(f"buffer_load_dwordx4 v[{96+4*k}:{99+4*k}], v10, s[52:55], s10 offen offset:{2048*(k&1)} sc1")
    a(f"v_lshrrev_b32 v10, 5, v1\nv_mul_u32_u24 v10, {QS}, v10\nv_lshl_add_u32 v10, v11, 3, v10")
    a(f"s_mul_i32 s10, s6, {2*QS}\ns_add_u32 s10, s10, {L_Q}\nv_add_u32 v10, s10, v10")
    a("s_waitcnt vmcnt(0)")
    for hh in range(2):
        b0 = 96 + 16 * hh
        for p in range(2):
            a(f"v_pk_add_f32 v[{b0+2*p}:{b0+2*p+1}], v[{b0+2*p}:{b0+2*p+1}], v[{b0+4+2*p}:{b0+5+2*p}]")
            a(f"v_pk_add_f32 v[{b0+8+2*p}:{b0+9+2*p}], v[{b0+8+2*p}:{b0+9+2*p}], v[{b0+12+2*p}:{b0+13+2*p}]")
        for p in range(2):
            a(f"v_pk_add_f32 v[{b0+2*p}:{b0+2*p+1}], v[{b0+2*p}:{b0+2*p+1}], v[{b0+8+2*p}:{b0+9+2*p}]")
    for i in range(4):
        a(f"v_permlane32_swap_b32 v{96+i}, v{112+i}")
    for p in range(2):
        a(f"v_pk_add_f32 v[{96+2*p}:{97+2*p}], v[{96+2*p}:{97+2*p}], v[{112+2*p}:{113+2*p}]")
    a("v_cvt_pk_bf16_f32 v100, v96, v97\nv_cvt_pk_bf16_f32 v101, v98, v99")
    a("ds_write_b64 v10, v[100:101]")
    a("s_waitcnt lgkmcnt(0)")
    arrive(C_Q)
    stamp(5)
    a("v_lshlrev_b32 v6, 12, v2\nv_lshl_add_u32 v6, v3, 4, v6")
    a("s_lshl_b32 s10, s13, 18\ns_lshl_b32 s11, s6, 16\ns_add_u32 s10, s10, s11\ns_lshl_b32 s11, s14, 8\ns_add_u32 s10, s10, s11")
    spin_lds(C_VISS, th_wo, sleep=2)
    for j in range(8):
        a(f"s_add_u32 s11, s10, {(8*(j&3)+(j>>2))*2048}")
        a(f"buffer_load_dwordx4 v[{64+4*j}:{67+4*j}], v6, s[48:51], s11 offen nt")
    stamp(6)
    a("v_lshrrev_b32 v10, 5, v1\nv_lshlrev_b32 v10, 14, v10\nv_and_b32 v11, 31, v1\nv_lshl_add_u32 v10, v11, 7, v10")
    a(f"s_lshr_b32 s10, s13, 3\ns_lshl_b32 s10, s10, 12\ns_and_b32 s11, s13, 7\ns_lshl_b32 s11, s11, 3\ns_add_u32 s10, s10, s11\ns_add_u32 s10, s10, {STP}")
    spin_lds(C_STPUB, 4, sleep=1)
    a("s_mov_b32 s63, 0")
    a("L_stp:")
    a("buffer_load_dwordx2 v[56:57], v10, s[52:55], s10 offen sc1")
    a("s_waitcnt vmcnt(0)")
    a("v_max_u32 v58, v56, v57")
    a("v_cmp_eq_u32 s[8:9], -1, v58")
    a("s_cmp_eq_u64 s[8:9], 0")
    a("s_cbranch_scc1 L_stpd")
    a("s_add_u32 s63, s63, 1\ns_cmp_lt_u32 s63, 0x40000\ns_cbranch_scc1 L_stp")
    a("L_stpd:")
    a("v_mov_b32 v58, v56")
    red32("v58", "v_max_f32", "v59")
    a("v_sub_f32 v56, v56, v58")
    a(f"v_mul_f32 v56, {f2u(LOG2E):#x}, v56")
    a("v_exp_f32 v56, v56")
    a("v_mul_f32 v57, v56, v57")
    red32("v57", "v_add_f32", "v59")
    a("v_rcp_f32 v57, v57")
    a("v_mul_f32 v56, v56, v57")
    a("v_lshrrev_b32 v11, 3, v1\nv_lshlrev_b32 v10, 2, v11")
    for k in range(8):
        a(f"ds_bpermute_b32 v{40+k}, v10, v56 offset:{32*k}")
    stamp(7)
    a("v_lshlrev_b32 v10, 12, v11\nv_and_b32 v11, 7, v1\nv_lshl_add_u32 v10, v11, 4, v10")
    a(f"s_lshr_b32 s10, s13, 3\ns_lshl_b32 s10, s10, 17\ns_and_b32 s11, s13, 7\ns_lshl_b32 s11, s11, 9\ns_add_u32 s10, s10, s11\ns_lshl_b32 s11, s6, 7\ns_add_u32 s10, s10, s11\ns_add_u32 s10, s10, {OP}")
    spin_lds(C_OPUB, 4, sleep=0)
    a("s_mov_b32 s63, 0")
    a("L_og:")
    for k in range(8):
        a(f"s_add_u32 s11, s10, {(k>>2)*4*32*4096 + (k&3)*8*4096}")
        a(f"buffer_load_dwordx4 v[{96+4*k}:{99+4*k}], v10, s[52:55], s11 offen sc1")
    for k in range(8):
        a(f"s_waitcnt vmcnt({7-k})")
        d = 96 + 4 * k; acc = 48 + 4 * (k >> 2)
        if k == 0:
            a(f"v_max3_u32 v56, v{d}, v{d+1}, v{d+2}\nv_max_u32 v56, v56, v{d+3}")
        else:
            a(f"v_max3_u32 v56, v56, v{d}, v{d+1}\nv_max3_u32 v56, v56, v{d+2}, v{d+3}")
        for i in range(4):
            if k & 3 == 0: a(f"v_mul_f32 v{acc+i}, v{40+k}, v{d+i}")
            else: a(f"v_fmac_f32 v{acc+i}, v{40+k}, v{d+i}")
    a("v_cmp_eq_u32 s[8:9], -1, v56")
    a("s_cmp_eq_u64 s[8:9], 0")
    a("s_cbranch_scc1 L_ogd")
    a("s_add_u32 s63, s63, 1\ns_cmp_lt_u32 s63, 0x40000\ns_cbranch_scc1 L_og")
    a("L_ogd:")
    stamp(8)
    call("F_rs")
    a("s_mov_b32 s10, s42")
    call("F_pack_gemv")
    stamp(9)
    a("s_branch L_fin")

    a("L_mlp:")
    a("v_lshrrev_b32 v11, 3, v1\nv_lshlrev_b32 v10, 10, v11\nv_and_b32 v11, 7, v1\nv_lshl_add_u32 v10, v11, 4, v10")
    a(f"s_lshl_b32 s10, s5, 13\ns_lshl_b32 s11, s6, 7\ns_add_u32 s10, s10, s11\ns_add_u32 s10, s10, {HP}")
    a("buffer_load_dwordx4 v[48:51], v10, s[52:55], s10 offen sc1")
    a("buffer_load_dwordx4 v[52:55], v10, s[52:55], s10 offen offset:512 sc1")
    srd(56, 30, 7168)
    a("v_lshlrev_b32 v10, 3, v11\nv_and_b32 v11, 1, v2\nv_lshl_add_u32 v10, v11, 2, v10")
    a("s_lshl_b32 s10, s5, 8\ns_lshl_b32 s11, s6, 6\ns_add_u32 s10, s10, s11")
    a("buffer_load_dword v56, v10, s[56:59], s10 offen")
    a("s_waitcnt vmcnt(0)")
    call("F_rs")
    bfr2("v48", "v49", "v50")
    a("v_lshlrev_b32 v57, 16, v56\nv_and_b32 v56, s15, v56")
    a("v_add_f32 v48, v48, v57\nv_add_f32 v49, v49, v56")
    bfr2("v48", "v49", "v50")
    K0 = 0.7978845608028654; K1 = 0.044715
    for r, t in (("v48", "v56"), ("v49", "v57")):
        a(f"v_mul_f32 {t}, {r}, {r}")
        a(f"v_mul_f32 {t}, {f2u(K1):#x}, {t}")
        a(f"v_fma_f32 {t}, {t}, {r}, {r}")
        a(f"v_mul_f32 {t}, {f2u(-2*K0*LOG2E):#x}, {t}")
        a(f"v_exp_f32 {t}, {t}")
        a(f"v_add_f32 {t}, 1.0, {t}")
        a(f"v_rcp_f32 {t}, {t}")
        a(f"v_mul_f32 {r}, {r}, {t}")
    stamp(5)
    a("v_lshlrev_b32 v6, 14, v2\nv_lshl_add_u32 v6, v3, 4, v6")
    a("s_lshl_b32 s10, s5, 18\ns_lshl_b32 s11, s6, 16\ns_add_u32 s10, s10, s11\ns_lshl_b32 s11, s4, 8\ns_add_u32 s10, s10, s11")
    spin_lds(C_VISS, th_w2, sleep=2)
    for j in range(8):
        if j and j % 2 == 0: a("s_add_u32 s10, s10, 4096")
        a(f"buffer_load_dwordx4 v[{64+4*j}:{67+4*j}], v6, s[48:51], s10 offen offset:{2048*(j&1)} nt")
    stamp(6)
    a("s_mov_b32 s10, s42")
    call("F_pack_gemv")
    stamp(7)
    a("s_cmp_lg_u32 s6, 0")
    a("s_cbranch_scc1 L_fin")
    a("v_and_b32 v11, 1, v2\nv_lshlrev_b32 v10, 2, v11")
    a("s_lshl_b32 s10, s4, 8\ns_lshl_b32 s11, s5, 3\ns_add_u32 s12, s10, s11")
    srd(44, 34, 2048)
    a("buffer_load_dword v57, v10, s[44:47], s12 offen")
    a("v_lshrrev_b32 v11, 5, v1\nv_lshl_add_u32 v15, v11, 11, v10")
    srd(56, 16, 4096)
    a("buffer_load_dword v56, v15, s[56:59], s12 offen")
    srd(48, 36, 4096)
    a("v_lshlrev_b32 v10, 9, v11\nv_and_b32 v11, 31, v1\nv_lshl_add_u32 v10, v11, 13, v10")
    a(f"s_lshl_b32 s10, s4, 10\ns_lshl_b32 s11, s5, 4\ns_add_u32 s10, s10, s11\ns_add_u32 s11, s10, {MP}\ns_add_u32 s10, s10, {SP}")
    spin_lds(F_CQ, 1, sleep=1)
    a("s_waitcnt vmcnt(0)")
    a("v_lshlrev_b32 v58, 16, v56\nv_and_b32 v59, s15, v56")
    a("v_lshlrev_b32 v60, 16, v57\nv_and_b32 v61, s15, v57")
    a("s_mov_b32 s63, 0")
    a("L_fg:")
    a("buffer_load_dwordx4 v[96:99], v10, s[52:55], s10 offen sc1")
    a("buffer_load_dwordx4 v[100:103], v10, s[52:55], s11 offen sc1")
    a("s_waitcnt vmcnt(0)")
    a("v_max3_u32 v56, v96, v97, v98\nv_max3_u32 v56, v56, v99, v100\nv_max3_u32 v56, v56, v101, v102\nv_max_u32 v56, v56, v103")
    a("v_cmp_eq_u32 s[8:9], -1, v56")
    a("v_permlane16_swap_b32 v96, v98\nv_permlane16_swap_b32 v97, v99\nv_permlane16_swap_b32 v100, v102\nv_permlane16_swap_b32 v101, v103")
    a("v_add_f32 v96, v96, v98\nv_add_f32 v97, v97, v99\nv_add_f32 v100, v100, v102\nv_add_f32 v101, v101, v103")
    for r in (8, 4, 2, 1):
        for v in (96, 97, 100, 101):
            a(f"v_add_f32_dpp v{v}, v{v}, v{v} row_ror:{r} row_mask:0xf bank_mask:0xf")
    bfr2("v100", "v101", "v56")
    bfr2("v96", "v97", "v57")
    a("v_add_f32 v100, v100, v60\nv_add_f32 v101, v101, v61")
    bfr2("v100", "v101", "v56")
    for r, t in (("v100", "v102"), ("v101", "v103")):
        a(f"v_mul_f32 {t}, {f2u(-LOG2E):#x}, {r}")
    a("v_exp_f32 v102, v102\nv_exp_f32 v103, v103")
    a("v_add_f32 v102, 1.0, v102\nv_add_f32 v103, 1.0, v103")
    a("v_rcp_f32 v102, v102\nv_rcp_f32 v103, v103")
    a("v_mul_f32 v100, v100, v102\nv_mul_f32 v101, v101, v103")
    bfr2("v100", "v101", "v56")
    a("v_mul_f32 v96, v96, v100\nv_mul_f32 v97, v97, v101")
    bfr2("v96", "v97", "v57")
    a("v_add_f32 v96, v96, v58\nv_add_f32 v97, v97, v59")
    a("v_cvt_pk_bf16_f32 v96, v96, v97")
    a("s_cmp_eq_u64 s[8:9], 0")
    a("s_cbranch_scc1 L_fgd")
    a("s_add_u32 s63, s63, 1\ns_cmp_lt_u32 s63, 0x40000\ns_cbranch_scc1 L_fg")
    a("L_fgd:")
    a("s_mov_b32 s8, 0x00010001\ns_mov_b32 s9, 0x00010001\ns_mov_b64 exec, s[8:9]")
    a("buffer_store_dword v96, v15, s[48:51], s12 offen")
    a("s_mov_b64 exec, -1")
    stamp(8)
    a("s_branch L_fin")

    a("F_ln:")
    for k in range(16):
        a(f"v_lshlrev_b32 v{96+2*k}, 16, v{40+k}\nv_and_b32 v{97+2*k}, s15, v{40+k}")
    a("v_pk_add_f32 v[56:57], v[96:97], v[98:99]\nv_pk_add_f32 v[58:59], v[100:101], v[102:103]")
    for k in range(4, 16, 2):
        a(f"v_pk_add_f32 v[56:57], v[56:57], v[{96+2*k}:{97+2*k}]\nv_pk_add_f32 v[58:59], v[58:59], v[{98+2*k}:{99+2*k}]")
    a("v_pk_add_f32 v[56:57], v[56:57], v[58:59]\nv_add_f32 v56, v56, v57")
    red32("v56", "v_add_f32", "v57")
    a(f"v_mul_f32 v56, {f2u(1/1024):#x}, v56")
    for k in range(16):
        t = 58 + 2 * (k & 1)
        a(f"v_pk_add_f32 v[{t}:{t+1}], v[{96+2*k}:{97+2*k}], v[56:57] op_sel_hi:[1,0] neg_lo:[0,1] neg_hi:[0,1]")
        if k == 0: a(f"v_pk_mul_f32 v[62:63], v[{t}:{t+1}], v[{t}:{t+1}]")
        else: a(f"v_pk_fma_f32 v[62:63], v[{t}:{t+1}], v[{t}:{t+1}], v[62:63]")
    a("v_add_f32 v62, v62, v63")
    red32("v62", "v_add_f32", "v63")
    a(f"v_mul_f32 v62, {f2u(1/1024):#x}, v62")
    bfr2("v56", "v62", "v58")
    a(f"v_add_f32 v62, {f2u(1e-5):#x}, v62")
    bfr1("v62", "v58")
    a("v_sqrt_f32 v62, v62")
    bfr1("v62", "v58")
    a("v_rcp_f32 v62, v62")
    for k in range(16):
        a(f"v_pk_add_f32 v[{96+2*k}:{97+2*k}], v[{96+2*k}:{97+2*k}], v[56:57] op_sel_hi:[1,0] neg_lo:[0,1] neg_hi:[0,1]")
    for k in range(16):
        a(f"v_cvt_pk_bf16_f32 v{40+k}, v{96+2*k}, v{97+2*k}")
    for k in range(16):
        a(f"v_lshlrev_b32 v{96+2*k}, 16, v{40+k}\nv_and_b32 v{97+2*k}, s15, v{40+k}")
    for k in range(16):
        a(f"v_pk_mul_f32 v[{96+2*k}:{97+2*k}], v[{96+2*k}:{97+2*k}], v[62:63] op_sel_hi:[1,0]")
    for k in range(16):
        a(f"v_cvt_pk_bf16_f32 v{40+k}, v{96+2*k}, v{97+2*k}")
    a("s_setpc_b64 s[60:61]")
    a("F_rs:")
    for i in range(4): a(f"v_permlane32_swap_b32 v{48+i}, v{52+i}")
    a("v_pk_add_f32 v[48:49], v[48:49], v[52:53]\nv_pk_add_f32 v[50:51], v[50:51], v[54:55]")
    a("v_permlane16_swap_b32 v48, v50\nv_permlane16_swap_b32 v49, v51")
    a("v_pk_add_f32 v[48:49], v[48:49], v[50:51]")
    a("v_add_f32_dpp v48, v48, v48 row_ror:8 row_mask:0xf bank_mask:0xf\nv_add_f32_dpp v49, v49, v49 row_ror:8 row_mask:0xf bank_mask:0xf")
    a("s_setpc_b64 s[60:61]")
    a("F_pack_gemv:")
    a("v_cvt_pk_bf16_f32 v50, v48, v49")
    a("ds_write_b32 v13, v50")
    a("s_waitcnt lgkmcnt(0)")
    a("ds_read_b128 v[24:27], v14")
    a("F_gemv:")
    a("s_waitcnt lgkmcnt(0)")
    def perms(j):
        for i in range(4):
            a(f"v_perm_b32 v{28+4*(j&1)+i}, v{24+(j>>1)}, v{24+(j>>1)}, v{16+2*i+(j&1)}")
    perms(0)
    for j in range(8):
        if j < 7: perms(j + 1)
        a(f"s_waitcnt vmcnt({7-j})")
        c = "0" if j == 0 else "v[36:39]"
        a(f"v_mfma_f32_16x16x32_bf16 v[36:39], v[{28+4*(j&1)}:{31+4*(j&1)}], v[{64+4*j}:{67+4*j}], {c}")
    a("v_mov_b32 v5, 1")
    a("ds_write_b128 v8, v[36:39]")
    a("s_waitcnt lgkmcnt(0)")
    a("s_mov_b64 exec, 1")
    a(f"ds_add_rtn_u32 v5, v12, v5 offset:{C_RED0}")
    a("s_mov_b64 exec, -1")
    a("s_waitcnt lgkmcnt(0)")
    a("v_readfirstlane_b32 s11, v5")
    a("s_and_b32 s11, s11, 3")
    a("s_cmp_eq_u32 s11, 3")
    a("s_mov_b32 s11, 0")
    a("s_cbranch_scc0 L_gret")
    for k in range(4):
        a(f"ds_read_b128 v[{96+4*k}:{99+4*k}], v9 offset:{1024*k}")
    a("s_waitcnt lgkmcnt(2)")
    a("v_pk_add_f32 v[96:97], v[96:97], v[100:101]\nv_pk_add_f32 v[98:99], v[98:99], v[102:103]")
    a("s_waitcnt lgkmcnt(0)")
    a("v_pk_add_f32 v[104:105], v[104:105], v[108:109]\nv_pk_add_f32 v[106:107], v[106:107], v[110:111]")
    a("v_pk_add_f32 v[96:97], v[96:97], v[104:105]\nv_pk_add_f32 v[98:99], v[98:99], v[106:107]")
    for i in range(4): a(f"v_min_u32 v{96+i}, -2, v{96+i}")
    a("buffer_store_dwordx4 v[96:99], v7, s[52:55], s10 offen sc1")
    a("s_mov_b32 s11, 1")
    a("L_gret:")
    a("s_setpc_b64 s[60:61]")

    a("L_attn:")
    a("s_sub_u32 s6, s3, 8")
    a("s_lshl_b32 s10, s4, 22\ns_lshl_b32 s11, s5, 17\ns_add_u32 s10, s10, s11\ns_lshl_b32 s13, s6, 14\ns_add_u32 s10, s10, s13")
    a("v_xor_b32 v8, v3, v2\nv_lshlrev_b32 v8, 4, v8\nv_lshl_add_u32 v8, v2, 8, v8")
    a("v_xor_b32 v9, 64, v8\nv_xor_b32 v10, 0x80, v8\nv_xor_b32 v11, 0xc0, v8")
    a("v_lshlrev_b32 v12, 10, v2\nv_lshl_add_u32 v12, v3, 4, v12")
    a("s_waitcnt lgkmcnt(0)")
    srd(44, 18, 0x2000000); srd(48, 20, 0x2000000); srd(52, 40, WS_SIZE)
    a("s_barrier")
    for q in range(4):
        a(f"s_add_u32 s12, s10, {q*4096}\ns_add_u32 m0, s13, {q*4096}")
        for k in range(4):
            a(f"buffer_load_dwordx4 v{8+k}, s[44:47], s12 offen offset:{k*1024} nt lds")
    for q in range(4):
        a(f"s_add_u32 s12, s10, {q*4096}")
        for r in range(4):
            s = q * 4 + r
            a(f"buffer_load_dwordx4 v[{64+4*s}:{67+4*s}], v12, s[48:51], s12 offen offset:{r*256} nt")
    arrive(C_VISS)
    stamp(1)
    a("v_xor_b32 v56, v3, v2\nv_lshlrev_b32 v56, 4, v56\nv_lshl_add_u32 v56, v3, 8, v56\nv_add_u32 v56, s13, v56")
    a("v_xor_b32 v57, 64, v56\nv_xor_b32 v58, 0x80, v56\nv_xor_b32 v59, 0xc0, v56")
    a(f"v_and_b32 v6, 7, v3\nv_mul_u32_u24 v60, {QS}, v6\nv_lshl_add_u32 v60, v2, 4, v60\nv_add_u32 v60, {L_Q}, v60")
    spin_lds(C_Q, 4, sleep=2)
    stamp(2)
    for j in range(4):
        a(f"ds_read_b128 v[{24+4*j}:{27+4*j}], v60 offset:{64*j}")
    a("s_waitcnt vmcnt(16)")
    for j in range(4):
        a(f"ds_read_b128 v[{40+4*j}:{43+4*j}], v{56+j}")
    for t in range(4):
        for j in range(4):
            a(f"s_waitcnt lgkmcnt({3 if t < 3 else 3-j})")
            c = "0" if j == 0 else f"v[{8+4*t}:{11+4*t}]"
            a(f"v_mfma_f32_16x16x32_bf16 v[{8+4*t}:{11+4*t}], v[{40+4*j}:{43+4*j}], v[{24+4*j}:{27+4*j}], {c}")
            if t < 3: a(f"ds_read_b128 v[{40+4*j}:{43+4*j}], v{56+j} offset:{4096*(t+1)}")
    a(f"s_mov_b32 s8, {f2u(128**-0.5):#x}\ns_mov_b32 s9, {f2u(LOG2E):#x}")
    for p in range(8):
        a(f"v_cvt_pk_bf16_f32 v{40+p}, v{8+2*p}, v{9+2*p}")
    for p in range(8):
        a(f"v_lshlrev_b32 v{8+2*p}, 16, v{40+p}\nv_and_b32 v{9+2*p}, s15, v{40+p}")
    for p in range(8):
        a(f"v_pk_mul_f32 v[{8+2*p}:{9+2*p}], v[{8+2*p}:{9+2*p}], s[8:9] op_sel_hi:[1,0]")
    for p in range(8):
        a(f"v_cvt_pk_bf16_f32 v{40+p}, v{8+2*p}, v{9+2*p}")
    for p in range(8):
        a(f"v_lshlrev_b32 v{8+2*p}, 16, v{40+p}\nv_and_b32 v{9+2*p}, s15, v{40+p}")
    a("v_max3_f32 v40, v8, v9, v10\nv_max3_f32 v41, v11, v12, v13")
    a("v_max3_f32 v40, v40, v14, v15\nv_max3_f32 v41, v41, v16, v17")
    a("v_max3_f32 v40, v40, v18, v19\nv_max3_f32 v41, v41, v20, v21")
    a("v_max3_f32 v40, v40, v22, v23\nv_max_f32 v40, v40, v41")
    a("v_mov_b32 v41, v40\nv_permlane16_swap_b32 v41, v40\nv_max_f32 v40, v40, v41")
    a("v_mov_b32 v41, v40\nv_permlane32_swap_b32 v41, v40\nv_max_f32 v40, v40, v41")
    a("v_mul_f32 v42, s9, v40")
    for i in range(16): a(f"v_fma_f32 v{8+i}, v{8+i}, s9, -v42")
    for i in range(16): a(f"v_exp_f32 v{8+i}, v{8+i}")
    a("v_pk_add_f32 v[44:45], v[8:9], v[10:11]\nv_pk_add_f32 v[46:47], v[12:13], v[14:15]")
    a("v_pk_add_f32 v[44:45], v[44:45], v[16:17]\nv_pk_add_f32 v[46:47], v[46:47], v[18:19]")
    a("v_pk_add_f32 v[44:45], v[44:45], v[20:21]\nv_pk_add_f32 v[46:47], v[46:47], v[22:23]")
    a("v_pk_add_f32 v[44:45], v[44:45], v[46:47]\nv_add_f32 v41, v44, v45")
    for p in range(8):
        a(f"v_cvt_pk_bf16_f32 v{8+p}, v{8+2*p}, v{9+2*p}")
    a("v_mov_b32 v42, v41\nv_permlane16_swap_b32 v42, v41\nv_add_f32 v41, v41, v42")
    a("v_mov_b32 v42, v41\nv_permlane32_swap_b32 v42, v41\nv_add_f32 v41, v41, v42")
    a(f"s_lshl_b32 s11, s6, 3\ns_add_u32 s11, s11, {L_ST}\nv_lshlrev_b32 v42, 6, v6\nv_add_u32 v42, s11, v42")
    a("s_mov_b64 exec, 0xff")
    a("ds_write_b64 v42, v[40:41]")
    a("s_mov_b64 exec, -1")
    a("s_waitcnt lgkmcnt(0)")
    arrive(C_ST)
    stamp(3)
    a(f"v_mul_u32_u24 v16, {OS}, v6\nv_lshl_add_u32 v16, v2, 7, v16\nv_add_u32 v16, s13, v16")
    a("s_mov_b32 s8, 0x05040100\ns_mov_b32 s9, 0x07060302")
    for blk in range(2):
        a(f"s_waitcnt vmcnt({8 - 8*blk})")
        base = 64 + 32 * blk
        def vperms(e):
            for i in range(4):
                a(f"v_perm_b32 v{56+4*(e&1)+i}, v{base+4*(2*i+1)+(e>>1)}, v{base+4*(2*i)+(e>>1)}, s{8+(e&1)}")
        vperms(0)
        for e in range(8):
            if e < 7: vperms(e + 1)
            c = "0" if blk == 0 else f"v[{24+4*e}:{27+4*e}]"
            a(f"v_mfma_f32_16x16x32_bf16 v[{24+4*e}:{27+4*e}], v[{56+4*(e&1)}:{59+4*(e&1)}], v[{8+4*blk}:{11+4*blk}], {c}")
    a("s_mov_b32 s8, 0x00ff00ff\ns_mov_b32 s9, 0x00ff00ff\ns_mov_b64 exec, s[8:9]")
    for e in range(8):
        a(f"ds_write_b128 v16, v[{24+4*e}:{27+4*e}] offset:{16*e}")
    a("s_mov_b64 exec, -1")
    a("s_lshr_b32 s11, s6, 2\ns_lshl_b32 s11, s11, 2\nv_add_u32 v17, s11, v4\nv_mov_b32 v5, 1")
    a("s_waitcnt lgkmcnt(0)")
    a("s_mov_b64 exec, 1")
    a(f"ds_add_u32 v17, v5 offset:{C_OA}")
    a("s_mov_b64 exec, -1")
    stamp(4)
    a("s_cmp_ge_u32 s6, 4")
    a("s_cbranch_scc1 L_fin")
    a(f"v_lshrrev_b32 v6, 5, v1\ns_lshl_b32 s11, s6, 1\nv_add_u32 v6, s11, v6")
    a(f"v_lshlrev_b32 v7, 6, v6\nv_add_u32 v7, {L_ST}, v7")
    a(f"v_and_b32 v8, 31, v1\nv_mul_u32_u24 v9, {OS}, v6\nv_lshl_add_u32 v9, v8, 4, v9")
    a("v_lshlrev_b32 v10, 9, v6\nv_lshl_add_u32 v10, v8, 4, v10")
    a("v_lshlrev_b32 v11, 3, v6")
    a(f"s_lshl_b32 s12, s4, 5\ns_add_u32 s12, s12, s5\ns_lshl_b32 s13, s12, 7\ns_add_u32 s13, s13, {STP}\ns_lshl_b32 s12, s12, 12\ns_add_u32 s12, s12, {OP}")
    spin_lds(C_ST, 8, sleep=1)
    for k in range(4):
        a(f"ds_read_b128 v[{24+4*k}:{27+4*k}], v7 offset:{16*k}")
    a("s_waitcnt lgkmcnt(0)")
    a("v_max3_f32 v52, v24, v26, v28\nv_max3_f32 v52, v52, v30, v32\nv_max3_f32 v52, v52, v34, v36\nv_max_f32 v52, v52, v38")
    a(f"s_mov_b32 s9, {f2u(LOG2E):#x}\nv_mul_f32 v54, s9, v52")
    for w in range(8): a(f"v_fma_f32 v{40+w}, v{24+2*w}, s9, -v54")
    for w in range(8): a(f"v_exp_f32 v{40+w}, v{40+w}")
    a("v_mul_f32 v53, v40, v25")
    for w in range(1, 8): a(f"v_fmac_f32 v53, v{40+w}, v{25+2*w}")
    a("v_min_u32 v52, -2, v52\nv_min_u32 v53, -2, v53")
    a("s_mov_b32 s8, 1\ns_mov_b32 s9, 1\ns_mov_b64 exec, s[8:9]")
    a("buffer_store_dwordx2 v[52:53], v11, s[52:55], s13 offen sc1")
    a("s_mov_b64 exec, -1")
    arrive(C_STPUB)
    stamp(5)
    for i in range(4): a(f"v_mov_b32 v{48+i}, 0")
    a("v_mov_b32 v17, v4\ns_mov_b32 s14, 0")
    a("L_ored:")
    spin_lds(C_OA, 4, sleep=0, base="v17")
    for k in range(4):
        a(f"ds_read_b128 v[{64+4*k}:{67+4*k}], v9 offset:{16384*k}")
    for k in range(4):
        a(f"s_waitcnt lgkmcnt({3-k})")
        for i in range(4): a(f"v_fmac_f32 v{48+i}, v{40+k}, v{64+4*k+i}")
    a("s_cmp_eq_u32 s14, 1")
    a("s_cbranch_scc1 L_oredd")
    a("s_mov_b32 s14, 1\nv_add_u32 v17, 4, v17\nv_add_u32 v9, 0x10000, v9")
    for k in range(4): a(f"v_mov_b32 v{40+k}, v{44+k}")
    a("s_branch L_ored")
    a("L_oredd:")
    for i in range(4): a(f"v_min_u32 v{48+i}, -2, v{48+i}")
    a("buffer_store_dwordx4 v[48:51], v10, s[52:55], s12 offen sc1")
    arrive(C_OPUB)
    stamp(6)

    a("L_fin:")
    if diag:
        a("s_waitcnt vmcnt(0) lgkmcnt(0)")
        a(f"s_memrealtime s[{64+2*(NST-1)}:{65+2*(NST-1)}]\ns_waitcnt lgkmcnt(0)")
        a(f"s_lshl_b32 s4, s2, 4\ns_add_u32 s4, s4, s3\ns_mul_i32 s4, s4, {NST*8}\ns_add_u32 s4, s4, 0x8000000")
        a("s_add_u32 s40, s40, s4\ns_addc_u32 s41, s41, 0\nv_mov_b32 v10, 0\ns_mov_b64 exec, 1")
        for i in range(NST):
            a(f"v_mov_b32 v12, s{64+2*i}\nv_mov_b32 v13, s{65+2*i}\nglobal_store_dwordx2 v10, v[12:13], s[40:41] offset:{8*i}\ns_nop 1")
    a("L_end:")
    a("s_endpgm")
    a(f'.section .rodata,"a"\n.p2align 6\n.amdhsa_kernel {KN}')
    a(".amdhsa_next_free_vgpr 128\n.amdhsa_next_free_sgpr 96\n.amdhsa_accum_offset 128\n.amdhsa_group_segment_fixed_size 0")
    a(".amdhsa_kernarg_size 104\n.amdhsa_user_sgpr_count 2\n.amdhsa_user_sgpr_kernarg_segment_ptr 1\n.amdhsa_system_sgpr_workgroup_id_x 1")
    a(".amdhsa_float_denorm_mode_32 3\n.end_amdhsa_kernel")
    return a.finish()

if __name__ == "__main__":
    open("k1.s", "w").write(gen())
    open("k1d.s", "w").write(gen(diag=True))
```

```python
import sys
KN = "recurrent_scan__gqa_block_cached__mixer_channel_mlp__decode_kernel"
def gen(nt="", order="A", kdma=True, nst=4, xmax=8, umax=32, spin=0, rowpat=0, late=False, unit128=False, amap=0, spread=False, thr=0, thrw=0, thr_odd=None, probe=None, ping=None, pdelay=600, vcont=False, kvint=False, xr=0, vfirst=False):
    L = []
    e = L.append
    e("; @launch grid=(256,1,1) block=(1024,1,1) lds=139264")
    e('.amdgcn_target "amdgcn-amd-amdhsa--gfx950"')
    e(".text"); e(f".globl {KN}"); e(".p2align 8"); e(f".type {KN},@function"); e(f"{KN}:")
    e("s_memrealtime s[60:61]")
    e("s_cmp_ge_u32 s2, 256"); e("s_cbranch_scc1 L_end")
    e("s_and_b32 s4, s2, 7"); e(f"s_cmp_ge_u32 s4, {xmax}"); e("s_cbranch_scc1 L_end")
    e("s_lshr_b32 s4, s2, 3"); e(f"s_cmp_ge_u32 s4, {umax}"); e("s_cbranch_scc1 L_end")
    e("s_load_dwordx16 s[16:31], s[0:1], 0")
    e("s_load_dwordx8 s[32:39], s[0:1], 64")
    e("s_load_dwordx2 s[40:41], s[0:1], 96")
    e("v_lshrrev_b32 v1, 6, v0")
    e("v_and_b32 v2, 63, v0")
    e("v_readfirstlane_b32 s3, v1")
    e("v_lshrrev_b32 v3, 4, v2")
    e("v_and_b32 v4, 15, v2")
    e("v_mov_b32 v10, 139200"); e("v_mov_b32 v11, 0"); e("ds_write_b32 v10, v11")
    e("s_waitcnt lgkmcnt(0)")
    def srd(d, p, n):
        e(f"s_mov_b32 s{d}, s{p}"); e(f"s_and_b32 s{d+1}, s{p+1}, 0xffff"); e(f"s_mov_b32 s{d+2}, {n}"); e(f"s_mov_b32 s{d+3}, 0x20000")
    e("s_cmp_ge_u32 s3, 8"); e("s_cbranch_scc1 L_attn")
    e("s_lshr_b32 s4, s2, 3")
    e("s_and_b32 s5, s2, 7")
    e("s_and_b32 s6, s3, 3")
    e("s_lshl_b32 s7, s5, 7"); e("s_lshl_b32 s8, s6, 5"); e("s_add_u32 s7, s7, s8")
    e("s_cmp_ge_u32 s3, 4"); e("s_cbranch_scc1 L_w1")
    srd(44, 22, 8388608)
    e("s_mov_b32 s9, 8192")
    srd(48, 24, 8388608)
    e("s_branch L_w1done")
    e("L_w1:")
    srd(44, 28, 7340032)
    e("s_mov_b32 s9, 7168")
    srd(48, 32, 7340032)
    e("s_cmp_lt_u32 s4, 28"); e("s_cbranch_scc1 L_w1done")
    e("s_mov_b32 s46, 0")
    e("L_w1done:")
    e("v_mul_lo_u32 v5, v3, s9"); e(f"v_lshlrev_b32 v5, {3 if rowpat else 2}, v5"); e("v_lshl_add_u32 v5, v4, 4, v5")
    e("s_mul_i32 s10, s7, s9"); e("s_lshl_b32 s11, s4, 8"); e("s_add_u32 s10, s10, s11")
    for s in range(8):
        t, r = s >> 2, s & 3
        e(f"s_mul_i32 s12, s9, {s if rowpat else 16*t+r}"); e("s_add_u32 s12, s12, s10")
        e(f"buffer_load_dwordx4 v[{16+4*s}:{19+4*s}], v5, s[44:47], s12 offen {nt}")
        if thrw and s < 7: e(f"s_waitcnt vmcnt({thrw-1})")
    e("s_memrealtime s[62:63]")
    if order == "B":
        e("s_barrier")
    e("s_waitcnt vmcnt(0)")
    e("s_memrealtime s[64:65]")
    if ping:
        stfl, partner, mode = ping
        e("s_cmp_lg_u32 s3, 0"); e("s_cbranch_scc1 L_noping")
        e("s_mov_b32 s52, s40"); e("s_and_b32 s53, s41, 0xffff"); e("s_mov_b32 s54, 0x100000"); e("s_mov_b32 s55, 0x20000")
        e("s_lshl_b32 s14, s2, 7"); e(f"s_xor_b32 s15, s2, {partner}"); e("s_lshl_b32 s15, s15, 7")
        e("v_lshlrev_b32 v8, 4, v2"); e("v_mov_b32 v9, 0")
        for r in range(4): e(f"v_mov_b32 v{100+r}, 0x5a5a1234")
        def poll():
            if mode == "s": e("s_load_dword s74, s[40:41], s15 glc"); e("s_waitcnt lgkmcnt(0)")
            elif mode == "sn": e("s_load_dword s74, s[40:41], s15"); e("s_waitcnt lgkmcnt(0)")
            else:
                e("buffer_load_dword v104, v9, s[52:55], s15 offen sc1"); e("s_waitcnt vmcnt(0)"); e("v_readfirstlane_b32 s74, v104"); e("s_nop 1")
        e("s_waitcnt lgkmcnt(0)")
        poll()
        e("L_pw:"); e("s_memrealtime s[62:63]"); e("s_waitcnt lgkmcnt(0)"); e("s_sub_u32 s75, s62, s60"); e(f"s_cmp_lt_u32 s75, {pdelay}"); e("s_cbranch_scc1 L_pw")
        e("s_mov_b64 exec, 0xff"); e(f"buffer_store_dwordx4 v[100:103], v8, s[52:55], s14 offen {stfl}"); e("s_mov_b64 exec, -1")
        e("s_mov_b32 s76, 0")
        e("L_pp:"); poll(); e("s_add_u32 s76, s76, 1"); e("s_cmp_eq_u32 s74, 0x5a5a1234"); e("s_cbranch_scc1 L_pd"); e("s_cmp_lt_u32 s76, 100"); e("s_cbranch_scc1 L_pp")
        e("L_pd:"); e("s_memrealtime s[64:65]"); e("s_waitcnt lgkmcnt(0)")
        e("L_noping:")
    if probe:
        kind, fl, cnt, shared = probe
        e("s_cmp_lg_u32 s3, 0"); e("s_cbranch_scc1 L_noprobe")
        e("s_mov_b32 s52, s40"); e("s_and_b32 s53, s41, 0xffff"); e("s_mov_b32 s54, 0x1000000"); e("s_mov_b32 s55, 0x20000")
        e("v_lshlrev_b32 v8, 4, v2")
        if shared: e("s_and_b32 s14, s2, 7"); e("s_lshl_b32 s14, s14, 16")
        else: e("s_lshl_b32 s14, s2, 15")
        e("s_waitcnt lgkmcnt(0)")
        e("s_memrealtime s[62:63]")
        for i in range(cnt):
            if kind == "ld": e(f"buffer_load_dwordx4 v[100:103], v8, s[52:55], s14 offen {fl}")
            elif kind == "ld1":
                e("s_mov_b64 exec, 0xff"); e(f"buffer_load_dwordx4 v[100:103], v8, s[52:55], s14 offen {fl}"); e("s_mov_b64 exec, -1")
            elif kind == "st": e(f"buffer_store_dwordx4 v[100:103], v8, s[52:55], s14 offen {fl}")
            if kind == "oob":
                e("s_mov_b32 s14, 0x40000000"); e(f"buffer_load_dwordx4 v[100:103], v8, s[52:55], s14 offen {fl}"); e("s_waitcnt vmcnt(15)"); continue
            if kind == "hit":
                e(f"buffer_load_dwordx4 v[100:103], v8, s[52:55], s14 offen {fl}"); e("s_waitcnt vmcnt(15)"); continue
            if kind == "hit8":
                e("s_mov_b64 exec, 0xff"); e(f"buffer_load_dwordx4 v[100:103], v8, s[52:55], s14 offen {fl}"); e("s_mov_b64 exec, -1"); e("s_waitcnt vmcnt(15)"); continue
            e("s_add_u32 s14, s14, 1024")
            e("s_waitcnt vmcnt(0)")
        e("s_memrealtime s[64:65]")
        e("L_noprobe:")
    if late:
        e("v_mov_b32 v6, 139200"); e("s_mov_b32 s72, 0")
        e("L_sp:"); e("ds_read_b32 v7, v6"); e("s_waitcnt lgkmcnt(0)"); e("v_readfirstlane_b32 s73, v7"); e("s_nop 1")
        e("s_cmp_ge_u32 s73, 8"); e("s_cbranch_scc1 L_spd"); e(f"s_sleep {spin}"); e("s_add_u32 s72, s72, 1"); e("s_cmp_lt_u32 s72, 0x100000"); e("s_cbranch_scc1 L_sp"); e("L_spd:")
    e("s_lshr_b32 s4, s2, 2"); e("s_and_b32 s5, s2, 3")
    e("s_and_b32 s6, s3, 1"); e("s_bfe_u32 s8, s3, 0x10001")
    e("s_lshl_b32 s7, s4, 6"); e("s_lshl_b32 s6, s6, 5"); e("s_add_u32 s7, s7, s6")
    e("s_lshl_b32 s10, s7, 11"); e("s_lshl_b32 s11, s5, 9"); e("s_add_u32 s10, s10, s11"); e("s_lshl_b32 s11, s8, 8"); e("s_add_u32 s10, s10, s11")
    if unit128:
        e("s_lshr_b32 s4, s2, 3"); e("s_and_b32 s5, s2, 7"); e("s_and_b32 s6, s3, 3")
        e("s_lshl_b32 s10, s4, 18"); e("s_lshl_b32 s11, s6, 16"); e("s_add_u32 s10, s10, s11"); e("s_lshl_b32 s11, s5, 8"); e("s_add_u32 s10, s10, s11")
    e("v_lshlrev_b32 v5, 13, v3"); e("v_lshl_add_u32 v5, v4, 4, v5")
    for s in range(8):
        t, r = s >> 2, s & 3
        e(f"s_add_u32 s12, s10, {(16*t+r)*2048}")
        e(f"buffer_load_dwordx4 v[{48+4*s}:{51+4*s}], v5, s[48:51], s12 offen {nt}")
        if thrw: e(f"s_waitcnt vmcnt({thrw-1})")
    e("s_waitcnt vmcnt(0)")
    e("s_memrealtime s[66:67]")
    e("s_branch L_fin")
    e("L_attn:")
    srd(44, 18, 33554432); srd(48, 20, 33554432)
    e("s_sub_u32 s3, s3, 8")
    e("s_and_b32 s4, s2, 7"); e("s_lshr_b32 s5, s2, 3")
    if spread:
        e("s_and_b32 s6, s5, 7"); e("s_and_b32 s5, s5, 24"); e("s_add_u32 s5, s5, s4"); e("s_mov_b32 s4, s6")
    ush, wsh, QST = {0: (17, 14, 4096), 1: (12, 19, 131072), 2: (14, 19, 4096), 3: (13, 19, None), 4: (17, 0, 16384), 5: (17, 0, 4096), 6: (17, 0, 4096)}[amap]
    qoff = (lambda q: q*QST) if QST else (lambda q: (q>>1)*262144 + (q&1)*4096)
    e("s_lshl_b32 s10, s4, 22"); e(f"s_lshl_b32 s11, s5, {ush}"); e("s_add_u32 s10, s10, s11")
    if amap == 4:
        e("s_and_b32 s11, s3, 3"); e("s_lshl_b32 s11, s11, 12"); e("s_add_u32 s10, s10, s11"); e("s_lshr_b32 s11, s3, 2"); e("s_lshl_b32 s11, s11, 16"); e("s_add_u32 s10, s10, s11")
    elif amap == 5:
        e("s_add_u32 s11, s3, s5"); e("s_and_b32 s11, s11, 7"); e("s_lshl_b32 s11, s11, 14"); e("s_add_u32 s10, s10, s11")
    elif amap == 6:
        e("s_and_b32 s11, s3, 3"); e("s_lshl_b32 s11, s11, 15"); e("s_add_u32 s10, s10, s11"); e("s_lshr_b32 s11, s3, 2"); e("s_lshl_b32 s11, s11, 14"); e("s_add_u32 s10, s10, s11")
    else:
        e(f"s_lshl_b32 s11, s3, {wsh}"); e("s_add_u32 s10, s10, s11")
    e("v_xor_b32 v5, v4, v3"); e("v_lshlrev_b32 v5, 4, v5"); e("v_lshl_add_u32 v5, v3, 8, v5")
    e("v_xor_b32 v6, 64, v5"); e("v_xor_b32 v7, 0x80, v5"); e("v_xor_b32 v8, 0xc0, v5")
    e(f"v_lshlrev_b32 v9, {8 if vcont else 10}, v3"); e("v_lshl_add_u32 v9, v4, 4, v9")
    if order == "B":
        e("s_barrier")
    e("s_lshl_b32 s13, s3, 14")
    op = "s_xor_b32" if xr else "s_add_u32"
    if xr:
        e(f"s_lshr_b32 s11, s5, {xr-1}"); e("s_and_b32 s11, s11, 7"); e("s_lshl_b32 s11, s11, 14"); e("s_xor_b32 s10, s10, s11")
    def aloads(thr, order=None):
        seq = order or ([("K", q) for q in range(4)] + [("V", q) for q in range(4)])
        if kvint and not order: seq = [x for q in range(4) for x in (("K", q), ("V", q))]
        n = 0
        for kind, q in seq:
            e(f"{op} s12, s10, {qoff(q)}")
            if kind == "K":
                e(f"s_add_u32 m0, s13, {q*4096}"); e("s_nop 0")
            for a in range(4):
                if kind == "K": e(f"buffer_load_dwordx4 v{5+a}, s[44:47], s12 offen offset:{a*1024} {nt} lds")
                else: e(f"buffer_load_dwordx4 v[{16+4*(q*4+a)}:{19+4*(q*4+a)}], v9, s[48:51], s12 offen offset:{a*(1024 if vcont else 256)} {nt}")
                n += 1
                if thr and n < 32: e(f"s_waitcnt vmcnt({thr-1})")
    if vfirst:
        e("s_bitcmp1_b32 s5, 0"); e("s_cbranch_scc1 L_vf")
        aloads(thr); e("s_branch L_vfd"); e("L_vf:"); aloads(thr, [("V", q) for q in range(4)] + [("K", q) for q in range(4)]); e("L_vfd:")
    elif thr_odd is None: aloads(thr)
    else:
        e("s_bitcmp1_b32 s2, 0"); e("s_cbranch_scc1 L_odd")
        aloads(thr); e("s_branch L_oddd"); e("L_odd:"); aloads(thr_odd); e("L_oddd:")
    if late:
        e("v_mov_b32 v10, 139200"); e("v_mov_b32 v11, 1"); e("s_mov_b64 exec, 1"); e("ds_add_u32 v10, v11"); e("s_mov_b64 exec, -1")
    e("s_memrealtime s[62:63]")
    e("s_waitcnt vmcnt(16)")
    e("s_memrealtime s[64:65]")
    e("s_waitcnt vmcnt(0)")
    e("s_memrealtime s[66:67]")
    e("s_add_u32 s3, s3, 8")
    e("L_fin:")
    e("s_waitcnt lgkmcnt(0)")
    e("s_lshl_b32 s4, s2, 4"); e("s_add_u32 s4, s4, s3"); e(f"s_mul_i32 s4, s4, {nst*8}"); e("s_add_u32 s4, s4, 0x8000000")
    e("s_add_u32 s40, s40, s4"); e("s_addc_u32 s41, s41, 0")
    e("v_mov_b32 v10, 0")
    e("v_cmp_eq_u32 vcc, 0, v2"); e("s_and_saveexec_b64 s[70:71], vcc")
    for i in range(nst):
        e(f"v_mov_b32 v12, s{60+2*i}"); e(f"v_mov_b32 v13, s{61+2*i}")
        e(f"global_store_dwordx2 v10, v[12:13], s[40:41] offset:{8*i}")
        e("s_nop 1")
    e("s_waitcnt vmcnt(0)")
    e("L_end:")
    e("s_endpgm")
    e('.section .rodata,"a"'); e(".p2align 6"); e(f".amdhsa_kernel {KN}")
    e(".amdhsa_next_free_vgpr 128"); e(".amdhsa_next_free_sgpr 80"); e(".amdhsa_accum_offset 128")
    e(".amdhsa_group_segment_fixed_size 0"); e(".amdhsa_kernarg_size 104"); e(".amdhsa_user_sgpr_count 2")
    e(".amdhsa_user_sgpr_kernarg_segment_ptr 1"); e(".amdhsa_system_sgpr_workgroup_id_x 1"); e(".end_amdhsa_kernel")
    return "\n".join(L) + "\n"
open("st_a.s", "w").write(gen())
open("st_nt.s", "w").write(gen(nt="nt"))
open("st_b.s", "w").write(gen(order="B"))
open("st_bnt.s", "w").write(gen(order="B", nt="nt"))

open("st_x1.s", "w").write(gen(order="B", nt="nt", xmax=1))
open("st_x2.s", "w").write(gen(order="B", nt="nt", xmax=2))
open("st_x4.s", "w").write(gen(order="B", nt="nt", xmax=4))
open("st_u16.s", "w").write(gen(order="B", nt="nt", umax=16))
open("st_u8.s", "w").write(gen(order="B", nt="nt", umax=8))
open("st_u1.s", "w").write(gen(order="B", nt="nt", umax=1))

open("s0.s", "w").write(gen(order="B", nt="nt"))
open("s1.s", "w").write(gen(order="B", nt="nt", rowpat=1, unit128=True))
open("s2.s", "w").write(gen(order="B", nt="nt", late=True, spin=2))
open("s3.s", "w").write(gen(order="B", nt="nt", late=True, spin=16))
open("s4.s", "w").write(gen(order="B", nt="nt", late=True, spin=2, rowpat=1, unit128=True))

for am in range(4):
    for sp in (0, 1):
        open(f"m{am}{sp}.s", "w").write(gen(order="B", nt="nt", late=True, spin=2, rowpat=1, unit128=True, amap=am, spread=bool(sp)))

for t in (0, 3, 4, 5, 6, 8):
    open(f"t{t}.s", "w").write(gen(order="B", nt="nt", late=True, spin=2, rowpat=1, unit128=True, thr=t, thrw=t))

for te, to in ((2,0),(3,0),(4,0),(3,4),(3,5),(2,3)):
    open(f"p{te}{to}.s", "w").write(gen(order="B", nt="nt", late=True, spin=2, rowpat=1, unit128=True, thr=te, thrw=0, thr_odd=to))

P = {"q0": None, "q1": ("ld", "", 3, False), "q2": ("ld", "sc1", 3, False), "q3": ("ld", "nt", 3, False), "q4": ("ld", "sc1 nt", 3, False),
     "q5": ("st", "sc1", 3, False), "q6": ("st", "", 3, False), "q7": ("st", "sc1 nt", 3, False), "q8": ("ld", "sc1", 3, True), "q9": ("st", "nt", 3, False)}
for n, p in P.items():
    open(n + ".s", "w").write(gen(order="B", nt="nt", late=True, spin=2, rowpat=1, unit128=True, probe=p))

P = {"r0": None, "r1": ("oob", "", 32, True), "r2": ("oob", "", 64, True), "r3": ("hit", "sc1 nt", 32, True), "r4": ("hit", "sc1 nt", 64, True),
     "r5": ("hit8", "sc1 nt", 64, True), "r6": ("hit", "sc1", 64, True), "r7": ("hit", "", 64, True)}
for n, p in P.items():
    open(n + ".s", "w").write(gen(order="B", nt="nt", late=True, spin=2, rowpat=1, unit128=True, probe=p))

P = {"u0": ("", 8, "s"), "u1": ("sc1", 1, "s"), "u2": ("", 8, "v"), "u3": ("sc1", 1, "v"), "u4": ("", 8, "sn"), "u5": ("sc1", 8, "s")}
for n, p in P.items():
    open(n + ".s", "w").write(gen(order="B", nt="nt", late=True, spin=2, rowpat=1, unit128=True, ping=p))

for t in (3, 4, 5, 6):
    for m in ("s", "v"):
        open(f"w{t}{m}.s", "w").write(gen(order="B", nt="nt", late=True, spin=2, rowpat=1, unit128=True, ping=("sc1", 1, m), thr=t, thrw=t))

i = 0
for fl in ("", "sc0", "nt", "sc1"):
    for m in ("s", "v"):
        open(f"x{i}.s", "w").write(gen(order="B", nt="nt", late=True, spin=2, rowpat=1, unit128=True, ping=(fl, 8, m), thr=3, thrw=3))
        open(f"y{i}.s", "w").write(gen(order="B", nt="nt", late=True, spin=2, rowpat=1, unit128=True, ping=(fl, 8, m), thr=3, thrw=3, pdelay=2000))
        i += 1
open(f"y8.s", "w").write(gen(order="B", nt="nt", late=True, spin=2, rowpat=1, unit128=True, ping=("sc1", 1, "s"), thr=3, thrw=3, pdelay=2000))
open(f"y9.s", "w").write(gen(order="B", nt="nt", late=True, spin=2, rowpat=1, unit128=True, ping=("sc1", 1, "v"), thr=3, thrw=3, pdelay=2000))

K = dict(order="B", late=True, spin=2, rowpat=1, unit128=True)
open("ba_0.s", "w").write(gen(nt="nt", **K))
open("ba_1.s", "w").write(gen(nt="nt", vcont=True, **K))
open("ba_2.s", "w").write(gen(nt="", vcont=True, **K))
open("ba_3.s", "w").write(gen(nt="sc0 nt", vcont=True, **K))
open("ba_4.s", "w").write(gen(nt="sc1 nt", vcont=True, **K))
open("ba_5.s", "w").write(gen(nt="sc0 sc1 nt", vcont=True, **K))
open("ba_6.s", "w").write(gen(nt="sc1", vcont=True, **K))

K = dict(order="B", late=True, spin=2, rowpat=1, unit128=True, nt="nt")
open("bb_0.s", "w").write(gen(**K))
open("bb_1.s", "w").write(gen(amap=4, **K))
open("bb_2.s", "w").write(gen(amap=5, **K))
open("bb_3.s", "w").write(gen(amap=6, **K))
open("bb_4.s", "w").write(gen(thr=3, thrw=0, thr_odd=5, **K))
open("bb_5.s", "w").write(gen(amap=4, thr=3, thrw=0, thr_odd=5, **K))
K["rowpat"] = 0
open("bb_6.s", "w").write(gen(**K))

K = dict(order="B", late=True, spin=2, rowpat=1, unit128=True, nt="nt", amap=4)
open("bc_0.s", "w").write(gen(**K))
open("bc_1.s", "w").write(gen(kvint=True, **K))
open("bc_2.s", "w").write(gen(xr=1, **K))
open("bc_3.s", "w").write(gen(xr=3, **K))
open("bc_4.s", "w").write(gen(vfirst=True, **K))
open("bc_5.s", "w").write(gen(kvint=True, xr=1, **K))
open("bc_6.s", "w").write(gen(vfirst=True, xr=2, **K))
```
